```python
import torch

def _softmax(x, axis=-1):
    return torch.softmax(x, dim=axis)
def _gelu(x):
    return torch.nn.functional.gelu(x, approximate="tanh")
def _silu(x):
    return torch.nn.functional.silu(x)
def _sigmoid(x):
    return torch.sigmoid(x)
def _layernorm(x, axis=-1, eps=1e-5):
    m = x.mean(dim=axis, keepdim=True)
    v = x.var(dim=axis, keepdim=True, unbiased=False)
    return (x - m) / torch.sqrt(v + eps)
def _scatter_add(tgt, idx, src, axis=0):
    return tgt.clone().index_add_(axis, idx, src)
def _segment_sum(src, seg, n):
    out = torch.zeros((n,) + src.shape[1:], dtype=src.dtype)
    return out.index_add_(0, seg, src)
def _pad(x, pw):
    flat = tuple(v for pair in reversed(pw) for v in pair)
    return torch.nn.functional.pad(x, flat)

kernel_name = 'recurrent_scan__sliding_block_cached__glu_gated_reglu__decode'

def setup_inputs():

    _w = (lambda a: (lambda t: t.to(torch.bfloat16) if t.is_floating_point() else t)(torch.as_tensor(a)))
    def _A_setup():
        B, Sq, D = 4, 1, 448
        Hq, Hkv, Sk, Dh = 16, 8, 8192, 256
        assert Hq % Hkv == 0, (Hq, Hkv)
        return {
            "x": _w((lambda *s: torch.randn(*s, dtype=torch.bfloat16) * 0.05)(B, Sq, D)),
            "k_cache": _w((lambda *s: torch.randn(*s, dtype=torch.bfloat16) * 3.2)(B, Hkv, Sk, Dh)),
            "v_cache": _w((lambda *s: torch.randn(*s, dtype=torch.bfloat16) * 3.2)(B, Hkv, Sk, Dh)),
            "wq": _w((lambda *s: torch.randn(*s, dtype=torch.bfloat16) * 3.2)(D, Hq * Dh) * (D ** -0.5)),
            "wo": _w((lambda *s: torch.randn(*s, dtype=torch.bfloat16) * 3.2)(Hq * Dh, D) * ((Hq * Dh) ** -0.5)),
        }
    _A_in = _A_setup()

    def _B_setup():
        B, S, D, F = 4, 1, 448, 1792
        return {
            "x": _w((lambda *s: torch.randn(*s, dtype=torch.bfloat16) * 0.05)(B, S, D)),
            "W_gate": _w((lambda *s: torch.randn(*s, dtype=torch.bfloat16) * 0.4)(D, F) * (2.0 / D) ** 0.5),
            "W_up": _w((lambda *s: torch.randn(*s, dtype=torch.bfloat16) * 0.4)(D, F) * (2.0 / D) ** 0.5),
            "W_down": _w((lambda *s: torch.randn(*s, dtype=torch.bfloat16) * 0.4)(F, D) * (1.0 / F) ** 0.5),
        }
    _B_in = _B_setup()

    return {
        "A_x": _A_in["x"],
        "A_k_cache": _A_in["k_cache"],
        "A_v_cache": _A_in["v_cache"],
        "A_wq": _A_in["wq"],
        "A_wo": _A_in["wo"],
        "B_x": _B_in["x"],
        "B_W_gate": _B_in["W_gate"],
        "B_W_up": _B_in["W_up"],
        "B_W_down": _B_in["W_down"],
    }

def reference(A_x, A_k_cache, A_v_cache, A_wq, A_wo, B_x, B_W_gate, B_W_up, B_W_down):
    def _A_ref(x, k_cache, v_cache, wq, wo):
        B, Sq, D = x.shape
        Hq, Dh = 16, 256
        Hkv, Sk = k_cache.shape[1], k_cache.shape[2]
        W = min(4096, max(256, Sk // 4))
        rep = Hq // Hkv
        q = (lambda x, *d: x.permute(*d))((x @ wq).reshape(B, Sq, Hq, Dh), 0, 2, 1, 3)
        k = (lambda x, n, axis: torch.repeat_interleave(x, n, dim=axis))(k_cache[:, :, Sk - W:, :], rep, axis=1)
        v = (lambda x, n, axis: torch.repeat_interleave(x, n, dim=axis))(v_cache[:, :, Sk - W:, :], rep, axis=1)
        scores = torch.einsum("bhqd,bhkd->bhqk", q, k) * (Dh ** -0.5)
        p = _softmax(scores, axis=-1)
        o = torch.einsum("bhqk,bhkd->bhqd", p, v)
        return (lambda x, *d: x.permute(*d))(o, 0, 2, 1, 3).reshape(B, Sq, Hq * Dh) @ wo

    def _B_ref(x, W_gate, W_up, W_down):
        gate = torch.einsum("bsd,df->bsf", x, W_gate)
        up = torch.einsum("bsd,df->bsf", x, W_up)
        gate = gate * (lambda x, dt: x.to(dt))(gate > 0, gate.dtype)
        h = gate * up
        return torch.einsum("bsf,fd->bsd", h, W_down)

    x = A_x
    xn = _layernorm(x, axis=-1)
    s = _A_ref(xn, A_k_cache, A_v_cache, A_wq, A_wo)
    g = _silu(_B_ref(xn, B_W_gate, B_W_up, B_W_down))
    return x + s * g
```

```python
import re
REG = re.compile(r'\b([vsa])(\d+)\b|\b([vsa])\[(\d+):(\d+)\]|\b(vcc|exec|m0|scc)\b|\b(vcc_lo|vcc_hi|exec_lo|exec_hi)\b')
def regs_of(op):
    out = set()
    for m in REG.finditer(op):
        if m.group(1): out.add((m.group(1), int(m.group(2))))
        elif m.group(3):
            for i in range(int(m.group(4)), int(m.group(5)) + 1): out.add((m.group(3), i))
        elif m.group(6): out.add((m.group(6), 0))
        elif m.group(7): out.add((m.group(7).split('_')[0], 0))
    return out
TRANS = ("v_exp_f32", "v_log_f32", "v_rcp_f32", "v_rsq_f32", "v_sqrt_f32", "v_sin_f32", "v_cos_f32")
class Ins:
    def __init__(self, text):
        self.text = text
        t = text.split(';')[0].strip()
        self.label = t.endswith(':')
        self.raw = t
        if self.label:
            self.op = None; self.name = t[:-1]; return
        parts = t.split(None, 1)
        self.op = parts[0]
        rest = parts[1] if len(parts) > 1 else ''
        ops = []; depth = 0; cur = ''
        for ch in rest:
            if ch == '[': depth += 1
            if ch == ']': depth -= 1
            if ch == ',' and depth == 0: ops.append(cur.strip()); cur = ''
            else: cur += ch
        if cur.strip(): ops.append(cur.strip())
        self.mods = ''
        if ops:
            last = ops[-1].split(None, 1)
            if len(last) > 1 and not last[0].endswith(':'):
                ops[-1] = last[0]; self.mods = last[1]
        self.ops = ops
        op = self.op
        self.is_mfma = op.startswith("v_mfma")
        self.is_valu = op.startswith("v_") and not self.is_mfma
        self.is_salu = op.startswith("s_") and not op.startswith(("s_load", "s_buffer_load", "s_waitcnt", "s_nop", "s_barrier", "s_branch", "s_cbranch", "s_endpgm", "s_sleep", "s_setprio", "s_memtime", "s_memrealtime", "s_atomic"))
        self.is_ds = op.startswith("ds_")
        self.is_vmem = op.startswith(("buffer_", "global_", "flat_"))
        self.is_dpp = "_dpp" in op or any(k in self.mods for k in ("row_", "quad_perm", "wave_"))
        self.is_trans = op.replace("_e32", "").replace("_e64", "") in TRANS
        self.is_lanesel = op.startswith(("v_readlane", "v_readfirstlane"))
        self.is_permlane = op.startswith("v_permlane")
        self.lds_dma = self.is_vmem and (" lds" in (" " + self.mods) or "load_lds" in op)
        w = set(); r = set()
        R = [regs_of(o) for o in ops]
        allr = set().union(*R) if R else set()
        if self.is_mfma:
            w = R[0]; r = R[1] | R[2] | R[3]; self.srcc = R[3]; self.ab = R[1] | R[2]
        elif self.is_valu:
            if op.startswith("v_cmp"):
                w = R[0]; r = set().union(*R[1:])
            elif op.startswith(("v_add_co", "v_sub_co", "v_addc_co", "v_subb_co", "v_subrev_co", "v_mad_u64", "v_div_scale")):
                w = R[0] | R[1]; r = set().union(*R[2:])
            elif self.is_permlane:
                w = R[0] | R[1]; r = R[0] | R[1]
            else:
                w = R[0]; r = set().union(*R[1:]) if len(R) > 1 else set()
                if op.startswith(("v_fmac", "v_dot2c", "v_pk_fmac")) or self.is_dpp or "op_sel" in self.mods or "sdwa" in op: r |= R[0]
                if op.startswith("v_cndmask") and len(ops) == 3: r.add(("vcc", 0))
                if op.startswith("v_writelane"): r |= R[0]
        elif self.is_ds:
            if op.startswith(("ds_read", "ds_bpermute", "ds_permute", "ds_swizzle")) or "_rtn" in op:
                w = R[0]; r = set().union(*R[1:]) if len(R) > 1 else set()
            else: r = allr
        elif self.is_vmem:
            if self.lds_dma: r = allr | {("m0", 0)}
            elif "load" in op: w = R[0]; r = set().union(*R[1:])
            elif "atomic" in op and "sc0" in self.mods: w = R[0]; r = set().union(*R[1:])
            else: r = allr
        elif op.startswith(("s_load", "s_buffer_load", "s_memtime", "s_memrealtime")):
            w = R[0]; r = set().union(*R[1:]) if len(R) > 1 else set()
        elif op.startswith("s_cmp"):
            r = allr; w = {("scc", 0)}
        elif op.startswith(("s_cbranch", "s_branch", "s_waitcnt", "s_nop", "s_barrier", "s_endpgm", "s_sleep", "s_setprio")):
            if "vcc" in op: r = {("vcc", 0)}
            if "exec" in op: r = {("exec", 0)}
        elif self.is_salu:
            w = R[0]; r = set().union(*R[1:]) if len(R) > 1 else set()
            if "saveexec" in op: w = w | {("exec", 0)}; r = r | {("exec", 0)}
        self.w = w; self.r = r
        self.store_wide = self.is_vmem and ("store_dwordx4" in op or "store_dwordx3" in op)
        if self.store_wide:
            self.data = R[1] if op.startswith("global") else R[0]
    def states(self):
        if self.label: return 0
        if self.op == "s_nop": return int(self.ops[0], 0) + 1
        return 1
def isv(x): return x[0] in ('v', 'a')
def need(p, c):
    n = 0
    pw_v = {x for x in p.w if isv(x)}
    pw_s = {x for x in p.w if x[0] in ('s', 'vcc')}
    if p.is_valu:
        if c.is_mfma and (pw_v & c.r): n = max(n, 2)
        if c.is_valu and c.is_dpp and (pw_v & c.r): n = max(n, 2)
        if c.is_valu and c.is_lanesel and (pw_v & c.r): n = max(n, 1)
        if c.is_valu and c.is_permlane and (pw_v & c.r): n = max(n, 2)
        if p.is_trans and c.is_valu and (pw_v & c.r): n = max(n, 1)
        if ("sdwa" in p.op or "op_sel" in p.mods) and c.is_valu and (pw_v & (c.r | c.w)): n = max(n, 1)
        if pw_s:
            if c.is_valu and (pw_s & c.r): n = max(n, 4 if (c.op.startswith(("v_readlane", "v_writelane")) and (pw_s & regs_of(c.ops[-1]))) else 2)
            if c.is_vmem and (pw_s & c.r): n = max(n, 5)
        if ("exec", 0) in p.w:
            if c.is_valu or c.is_mfma: n = max(n, 5)
    if p.is_mfma:
        big = "32x32" in p.op
        rw, part, war = (12, 10, 7) if big else (8, 6, 3)
        if c.is_mfma:
            if p.w & c.ab: n = max(n, rw)
            if p.w & c.srcc and not (p.w == c.srcc): n = max(n, part)
            if (p.w & c.w) and not (p.w == c.srcc) and not (p.w & c.srcc): n = max(n, rw)
        elif c.is_valu or c.is_ds or c.is_vmem:
            if p.w & (c.r | c.w): n = max(n, rw)
        if c.is_valu and (p.srcc & c.w): n = max(n, war)
    if getattr(p, "store_wide", False) and c.is_valu and (p.data & c.w): n = max(n, 2)
    if p.is_salu and ("m0", 0) in p.w and c.lds_dma if (not c.label and c.is_vmem) else False: n = max(n, 1)
    return n
MAXD = 13
class Prog:
    def __init__(self): self.L = []
    def __call__(self, text):
        for line in text.split('\n'):
            line = line.strip()
            if not line or line.startswith(';'):
                if line.startswith(';'): self.L.append(("c", line))
                continue
            self.L.append(("i", Ins(line)))
    def comment(self, t): self.L.append(("c", "; " + t))
    def finalize(self):
        out = []; hist = []
        nn = 0
        for kind, x in self.L:
            if kind == "c" or x.label:
                out.append((kind, x)); continue
            d = 0; req = 0
            for p in reversed(hist):
                k = need(p, x)
                if k > d: req = max(req, k - d)
                d += p.states()
                if d >= MAXD: break
            if req > 0:
                nop = Ins(f"s_nop {req - 1}"); out.append(("i", nop)); hist.append(nop); nn += 1
            out.append((kind, x)); hist.append(x)
            if x.op in ("s_branch", "s_endpgm"): hist = []
        self.L = out
        self.nnops = nn
        self.verify_cfg()
    def verify_cfg(self):
        ins = [x for k, x in self.L if k == "i"]
        lab = {x.name: i for i, x in enumerate(ins) if x.label}
        def succ(i):
            x = ins[i]
            if x.label: return [i + 1]
            if x.op == "s_endpgm": return []
            if x.op == "s_branch": return [lab[x.ops[0]]]
            if x.op.startswith("s_cbranch"): return [i + 1, lab[x.ops[0]]]
            return [i + 1]
        bad = []
        for i, p in enumerate(ins):
            if p.label: continue
            if not (p.is_valu or p.is_mfma or getattr(p, "store_wide", False) or p.is_salu): continue
            stack = [(s, 0) for s in succ(i)]
            seen = set()
            while stack:
                j, d = stack.pop()
                if j >= len(ins) or d >= MAXD or (j, d) in seen: continue
                seen.add((j, d))
                c = ins[j]
                if not c.label:
                    k = need(p, c)
                    if k > d: bad.append((p.raw, c.raw, k, d))
                for s in succ(j): stack.append((s, d + c.states()))
        if bad:
            for b in bad[:20]: print("HAZARD:", b)
            raise SystemExit("hazard violations across control flow: %d" % len(bad))
    def text(self):
        o = []
        for k, x in self.L:
            if k == "c": o.append("    " + x)
            elif x.label: o.append(x.raw)
            else: o.append("    " + x.raw)
        return "\n".join(o)
    def maxreg(self):
        mv = ms = -1
        for k, x in self.L:
            if k == "i" and not x.label:
                for (t, n) in x.w | x.r:
                    if t == 'v': mv = max(mv, n)
                    if t == 's': ms = max(ms, n)
        return mv, ms
```

```python
KN = "recurrent_scan__sliding_block_cached__glu_gated_reglu__decode"
HEADER = """; Kernarg layout for this problem (96 bytes, ptrs only, base s[0:1]):
"""
def wrap(body, grid, block, lds, vgpr, sgpr=102, accum=None, name=None):
    name = name or (KN + "_kernel")
    if accum is None:
        accum = min(256, (vgpr + 3) // 4 * 4)
    return (HEADER + f"; @launch grid=({grid},1,1) block=({block},1,1) lds={lds}\n"
        + '.amdgcn_target "amdgcn-amd-amdhsa--gfx950"\n.text\n'
        + f".globl {name}\n.p2align 8\n.type {name},@function\n{name}:\n"
        + body + "\n    s_endpgm\n"
        + '.section .rodata,"a"\n.p2align 6\n'
        + f".amdhsa_kernel {name}\n  .amdhsa_next_free_vgpr {vgpr}\n  .amdhsa_next_free_sgpr {sgpr}\n  .amdhsa_accum_offset {accum}\n"
        + "  .amdhsa_group_segment_fixed_size 0\n  .amdhsa_kernarg_size 96\n  .amdhsa_user_sgpr_count 2\n  .amdhsa_user_sgpr_kernarg_segment_ptr 1\n  .amdhsa_system_sgpr_workgroup_id_x 1\n.end_amdhsa_kernel\n")
```

```python
import sys, argparse
from asmlib import *
from gen_common import HEADER, KN

class Cfg:
    W = 24
    stamps = False
    spin_bound = 1 << 18
    kv_flags = "nt"
    w_flags = "nt"
    gu_after = 4
    wd_after = 4
    wo_after = 8
    prio = 1
    psleep = 2
    force_remote = 0
    out_flags = ""
    fsleep = 4
    f1_rounds = 12
    qdelay = 24
    remap = 0
    dpdelay = 0
    pretouch = 1
cfg = Cfg()

WS_NONCE = 0x0
WS_QP = 0x1000
WS_GP = 0x50000
WS_OP = 0x90000
WS_ST = 0x110000
WS_DP = 0x120000
WS_Y = 0x160000
WS_F1 = 0x800
WS_F2 = 0xC00
WS_STAMP = 0x200000
NSLOT = 12
RING = 0; WQS = 98304; GUS = 114688; WOS = 131072; WDS = 147456; M = 155648
XNQ = M; XSTR = 1088; HL = XNQ
QL = M + 4352; PL = M + 5376; PSTR = 544; STATS = M + 6464; TAGS = M + 6528; OL = M + 6976; OSTR = 272; FL = M + 8064
F_XN = 0; F_LWQ = 4; F_LGU = 8; F_LK = 12; F_LWD = 16; F_LV = 20; F_Q = 24; F_LWO = 28
F_CONS = 32; F_BS = 48; F_BP = 52; F_BO = 56; F_YPUB = 60; F_TAG = 64; F_MODE = 68; F_WQFREE = 72; F_GUFREE = 76
LDS_SIZE = 163840
assert FL + 128 == LDS_SIZE
LSTAMP = {"wq": 3, "k3": 4, "k7": 5, "k11": 6, "k15": 7, "v3": 8, "v7": 9, "v11": 10, "v15": 11}
P = Prog()
uid = [0]
def lbl(s):
    uid[0] += 1
    return f"L_{s}_{uid[0]}"
S_KVH, S_J, S_B, S_S = "s4", "s5", "s6", "s7"
X_, K_, V_, WQ_, WO_, WG_, WU_, WD_, OUT_, DBG_, WS_ = "s[8:9]", "s[10:11]", "s[12:13]", "s[14:15]", "s[16:17]", "s[20:21]", "s[22:23]", "s[24:25]", "s[26:27]", "s[28:29]", "s[30:31]"
S_TAG = "s33"; S_W = "s32"; S_MODE = "s78"
S_SPIN = "s98"; S_T = "s99"
WSRD = 92
WS_SIZE = 0x400000
def ws_srd():
    P(f"s_mov_b32 s{WSRD}, s30"); P(f"s_mov_b32 s{WSRD + 1}, s31"); P(f"s_mov_b32 s{WSRD + 2}, {WS_SIZE}"); P(f"s_mov_b32 s{WSRD + 3}, 0x20000")
SPAIRS = [80, 82, 84, 86, 88, 90, 10, 12, 14, 16, 20, 22]
def stamp(n):
    if not cfg.stamps: return
    P(f"s_memrealtime s[{SPAIRS[n]}:{SPAIRS[n] + 1}]")
def dump_stamps():
    if not cfg.stamps: return
    P("s_waitcnt lgkmcnt(0)")
    P("s_lshl_b32 s96, s2, 3"); P("s_add_u32 s96, s96, s3"); P("s_lshl_b32 s96, s96, 6"); P(f"s_add_u32 s96, s96, {WS_STAMP}")
    P("s_mov_b64 exec, 1")
    P("v_mov_b32 v2, s96")
    for i in range(0, 12, 4):
        for k in range(4): P(f"v_mov_b32 v{4 + k}, s{SPAIRS[i + k]}")
        P(f"global_store_dwordx4 v2, v[4:7], {WS_} offset:{i * 4}")
        P("s_nop 1")
    P("s_waitcnt vmcnt(0)")
    P("s_mov_b64 exec, -1")
def lds_wait(vaddr, off, target, vtmp, sleep=0):
    L0 = lbl("w"); L1 = lbl("wd")
    P(f"s_mov_b32 {S_SPIN}, {cfg.spin_bound}")
    P(f"{L0}:")
    P(f"ds_read_b32 {vtmp}, {vaddr} offset:{off}")
    P(f"s_sub_u32 {S_SPIN}, {S_SPIN}, 1")
    P(f"s_cbranch_scc1 {L1}")
    P("s_waitcnt lgkmcnt(0)")
    P(f"v_readfirstlane_b32 {S_T}, {vtmp}")
    P(f"s_cmp_ge_u32 {S_T}, {target}")
    if sleep:
        P(f"s_cbranch_scc1 {L1}"); P(f"s_sleep {sleep}"); P(f"s_branch {L0}")
    else:
        P(f"s_cbranch_scc0 {L0}")
    P(f"{L1}:")
    P("s_waitcnt lgkmcnt(0)")
def lds_set(vaddr, off, value, vtmp):
    P("s_mov_b64 exec, 1"); P(f"v_mov_b32 {vtmp}, {value}"); P(f"ds_write_b32 {vaddr}, {vtmp} offset:{off}"); P("s_mov_b64 exec, -1")
def lds_inc(vaddr, off, vtmp):
    P("s_mov_b64 exec, 1"); P(f"v_mov_b32 {vtmp}, 1"); P(f"ds_add_u32 {vaddr}, {vtmp} offset:{off}"); P("s_mov_b64 exec, -1")
def srd(base, ptr, size):
    lo = int(ptr[2:].split(':')[0])
    P(f"s_mov_b32 s{base}, s{lo}"); P(f"s_mov_b32 s{base+1}, s{lo+1}")
    P(f"s_mov_b32 s{base+2}, {size}"); P(f"s_mov_b32 s{base+3}, 0x20000")
def allsum(v, t, op="v_add_f32"):
    for r in (8, 4, 2, 1):
        P(f"{op}_dpp {v}, {v}, {v} row_ror:{r} row_mask:0xf bank_mask:0xf")
    for sw in ("v_permlane16_swap_b32", "v_permlane32_swap_b32"):
        P(f"v_mov_b32 {t}, {v}"); P(f"{sw} {v}, {t}"); P(f"{op} {v}, {v}, {t}")
def allred2(va, vb, ta, tb, op):
    for r in (8, 4, 2, 1):
        P(f"{op}_dpp {va}, {va}, {va} row_ror:{r} row_mask:0xf bank_mask:0xf")
        P(f"{op}_dpp {vb}, {vb}, {vb} row_ror:{r} row_mask:0xf bank_mask:0xf")
    for sw in ("v_permlane16_swap_b32", "v_permlane32_swap_b32"):
        P(f"v_mov_b32 {ta}, {va}"); P(f"v_mov_b32 {tb}, {vb}")
        P(f"{sw} {va}, {ta}"); P(f"{sw} {vb}, {tb}")
        P(f"{op} {va}, {va}, {ta}"); P(f"{op} {vb}, {vb}, {tb}")
def rowsel(dst, srcs):
    if srcs[0] != dst: P(f"v_mov_b32 {dst}, {srcs[0]}")
    for g in (1, 2, 3):
        P(f"v_mov_b32_dpp {dst}, {srcs[g]} quad_perm:[0,1,2,3] row_mask:{hex(1 << g)} bank_mask:0xf")
def tag_consts():
    for k in range(4): P(f"s_mov_b32 s{72 + k}, {hex(0x07060500 + k)}")
    P("s_mov_b32 s76, 0x0c0c0400"); P("s_mov_b32 s77, 0x04000c0c")
def store_mode(text, flags):
    if flags != "mode":
        P(f"{text} {flags}"); return
    La = lbl("sm"); Lb = lbl("sme")
    P(f"s_cmp_lg_u32 {S_MODE}, 0"); P(f"s_cbranch_scc1 {La}")
    P(text); P(f"s_branch {Lb}")
    P(f"{La}:"); P(f"{text} sc1"); P(f"{Lb}:")
def quad_pack_store(src, dst, vtag, vaddr, off, flags, maskpair):
    P(f"v_mov_b32 v{dst}, {src}") if f"v{dst}" != src else None
    for k in (1, 2, 3):
        P(f"v_mov_b32_dpp v{dst + k}, {src} quad_perm:[{k},{k},{k},{k}] row_mask:0xf bank_mask:0xf")
    for k in range(4):
        P(f"v_perm_b32 v{dst + k}, v{dst + k}, {vtag}, s{72 + k}")
    P(f"s_mov_b64 exec, {maskpair}")
    store_mode(f"global_store_dwordx4 {vaddr}, v[{dst}:{dst + 3}], {WS_} offset:{off}", flags)
    P("s_mov_b64 exec, -1")
def check_granules(bases, vtag, t, full="-1"):
    for i, b in enumerate(bases):
        P(f"v_perm_b32 v{t}, v{b + 1}, v{b}, s76")
        P(f"v_perm_b32 v{t + 1}, v{b + 3}, v{b + 2}, s77")
        P(f"v_or_b32 v{t}, v{t}, v{t + 1}")
        if i == 0:
            P(f"v_cmp_eq_u32 s[40:41], {vtag}, v{t}")
        else:
            P(f"v_cmp_eq_u32 s[42:43], {vtag}, v{t}")
            P("s_and_b64 s[40:41], s[40:41], s[42:43]")
    P(f"s_cmp_eq_u64 s[40:41], {full}")
def check_granules_x(bases, vtag, t):
    for i, b in enumerate(bases):
        P(f"v_perm_b32 v{t}, v{b + 1}, v{b}, s76")
        P(f"v_perm_b32 v{t + 1}, v{b + 3}, v{b + 2}, s77")
        P(f"v_or_b32 v{t}, v{t}, v{t + 1}")
        if i == 0: P(f"v_xor_b32 v{t + 2}, {vtag}, v{t}")
        else:
            P(f"v_xor_b32 v{t}, {vtag}, v{t}"); P(f"v_or_b32 v{t + 2}, v{t + 2}, v{t}")
    P(f"v_and_b32 v{t}, 0xffffffe1, v{t + 2}")
    P(f"v_cmp_eq_u32 s[40:41], 0, v{t}")
    P("s_cmp_eq_u64 s[40:41], -1")
def mask_payload(regs):
    for r in regs: P(f"v_and_b32 v{r}, 0xffffff00, v{r}")
def poll_loop(name, loads, check, sleep=None, bound_shift=4):
    sleep = cfg.psleep if sleep is None else sleep
    Lg = lbl(name); Ld = lbl(name + "d")
    P(f"s_mov_b32 {S_SPIN}, {cfg.spin_bound >> bound_shift}")
    P(f"{Lg}:")
    loads()
    P(f"s_sub_u32 {S_SPIN}, {S_SPIN}, 1"); P(f"s_cbranch_scc1 {Ld}")
    P("s_waitcnt vmcnt(0)")
    check()
    P(f"s_cbranch_scc1 {Ld}")
    if sleep: P(f"s_sleep {sleep}")
    P(f"s_branch {Lg}")
    P(f"{Ld}:")
    P("s_waitcnt vmcnt(0)")

def prologue():
    P("s_cmp_ge_u32 s2, 256")
    P("s_cbranch_scc1 L_END")
    P("s_load_dwordx16 s[8:23], s[0:1], 0")
    P("s_load_dwordx8 s[24:31], s[0:1], 64")
    P("v_lshrrev_b32 v1, 6, v0")
    if cfg.remap: P(f"s_lshr_b32 {S_KVH}, s2, 5")
    else: P(f"s_and_b32 {S_KVH}, s2, 7")
    P("v_readfirstlane_b32 s3, v1")
    if cfg.remap: P(f"s_and_b32 {S_J}, s2, 31")
    else: P(f"s_lshr_b32 {S_J}, s2, 3")
    P(f"s_lshr_b32 {S_B}, {S_J}, 3")
    P(f"s_and_b32 {S_S}, {S_J}, 7")
    P("v_and_b32 v1, 63, v0")
    stamp(0)
    P("s_cmp_eq_u32 s3, 5"); P("s_cbranch_scc1 L_F")
    P("s_cmp_eq_u32 s3, 6"); P("s_cbranch_scc1 L_G")
    P("s_cmp_lg_u32 s3, 0"); P("s_cbranch_scc1 L_C")

def t2_ids(si, mu, r4, sl, tmp):
    P(f"s_lshr_b32 {si}, {S_J}, 3"); P(f"s_bfe_u32 {mu}, {S_J}, 0x10002"); P(f"s_and_b32 {r4}, {S_J}, 3")
    P(f"s_lshl_b32 {tmp}, {si}, 3"); P(f"s_add_u32 {sl}, {tmp}, {S_KVH}")
def t3_ids(si, c7, sl, tmp):
    P(f"s_min_u32 {tmp}, {S_J}, 27"); P(f"s_mul_i32 {si}, {tmp}, 37"); P(f"s_lshr_b32 {si}, {si}, 8")
    P(f"s_mul_i32 {c7}, {si}, 7"); P(f"s_sub_u32 {c7}, {tmp}, {c7}")
    P(f"s_lshl_b32 {tmp}, {si}, 3"); P(f"s_add_u32 {sl}, {tmp}, {S_KVH}")
def t4_ids(hd, c7, tmp):
    P(f"s_min_u32 {tmp}, {S_J}, 27"); P(f"s_mul_i32 {hd}, {tmp}, 37"); P(f"s_lshr_b32 {hd}, {hd}, 8")
    P(f"s_mul_i32 {c7}, {hd}, 7"); P(f"s_sub_u32 {c7}, {tmp}, {c7}")

def vslot(v):
    if v < 12: return RING + ((v + 16) % NSLOT) * 8192
    if v < 14: return WQS + (v - 12) * 8192
    return GUS + (v - 14) * 8192
def loader():
    P.comment("================= LOADER (wave 0) =================")
    if cfg.prio: P(f"s_setprio {cfg.prio}")
    P("v_lshrrev_b32 v18, 3, v1"); P("v_and_b32 v19, 7, v1"); P("v_and_b32 v20, 6, v18"); P("v_xor_b32 v20, v20, v19"); P("v_lshlrev_b32 v20, 4, v20")
    P("v_lshl_add_u32 v11, v18, 13, v20")
    P("v_mul_u32_u24 v12, 3584, v18"); P("v_add_u32 v12, v12, v20")
    P("v_mul_u32_u24 v13, 896, v18"); P("v_add_u32 v13, v13, v20")
    P(f"s_lshr_b32 s53, {S_J}, 3"); P(f"s_mul_i32 s51, s53, {112 * 8192}")
    P(f"s_lshl_b32 s53, {S_KVH}, 10"); P("s_add_u32 s51, s51, s53"); P(f"s_and_b32 s53, {S_J}, 7"); P("s_lshl_b32 s53, s53, 7"); P("s_add_u32 s51, s51, s53")
    P("v_lshrrev_b32 v18, 5, v1"); P("v_and_b32 v22, 31, v1")
    for i in range(8):
        P(f"v_add_u32 v20, {2 * i}, v18"); P("v_xor_b32 v20, v20, v22"); P("v_lshlrev_b32 v20, 4, v20")
        P(f"v_lshl_add_u32 v{2 + i}, v18, 9, v20")
    P(f"s_lshl_b32 s48, {S_B}, 3"); P(f"s_add_u32 s48, s48, {S_KVH}"); P("s_lshl_b32 s48, s48, 22"); P("s_add_u32 s48, s48, 0x300000")
    P(f"s_lshl_b32 s49, {S_S}, 17"); P("s_add_u32 s49, s49, s48")
    P(f"v_mov_b32 v15, {FL}")
    P("s_waitcnt lgkmcnt(0)")
    srd(40, WQ_, 448 * 8192); srd(32, K_, 0x8000000)
    if cfg.stamps: ws_srd()
    stamp(1)
    kf = cfg.kv_flags; wf = cfg.w_flags
    def late_setup():
        srd(36, V_, 0x8000000); srd(44, WD_, 1792 * 896); srd(64, WO_, 4096 * 896)
        for i in range(4):
            P(f"v_add_u32 v20, {2 * i}, v18"); P("v_lshlrev_b32 v20, 1, v20"); P("v_xor_b32 v20, v20, v22"); P("v_lshlrev_b32 v20, 4, v20")
            P(f"v_lshl_add_u32 v{24 + i}, v18, 9, v20")
        t2_ids("s52", "s53", "s54", "s55", "s56")
        P("s_min_u32 s55, s55, 27")
        P("s_cmp_eq_u32 s53, 0")
        P("s_cselect_b32 s68, s20, s22"); P("s_cselect_b32 s69, s21, s23"); P(f"s_mov_b32 s70, {448 * 3584}"); P("s_mov_b32 s71, 0x20000")
        P(f"s_mul_i32 s54, s54, {112 * 3584}"); P("s_lshl_b32 s55, s55, 7"); P("s_add_u32 s54, s54, s55")
        t3_ids("s52", "s53", "s55", "s56")
        P("s_min_u32 s55, s55, 27")
        P(f"s_mul_i32 s57, s55, {64 * 896}"); P("s_lshl_b32 s53, s53, 7"); P("s_add_u32 s57, s57, s53")
        t4_ids("s52", "s53", "s56")
        P(f"s_lshl_b32 s58, {S_KVH}, 2"); P("s_add_u32 s58, s58, s52"); P(f"s_mul_i32 s58, s58, {128 * 896}"); P("s_lshl_b32 s53, s53, 7"); P("s_add_u32 s58, s58, s53")
    def tile(n, lds, vreg, srdn, sb, rstride):
        def f():
            for i in range(n):
                P(f"s_mov_b32 m0, {lds + i * 1024}"); P(f"s_add_u32 s60, {sb}, {i * 8 * rstride}")
                P(f"buffer_load_dwordx4 {vreg}, s[{srdn}:{srdn + 3}], s60 offen {wf} lds")
        return f
    def iss_k(u):
        def f():
            for h in range(2):
                P(f"s_mov_b32 m0, {RING + (u % NSLOT) * 8192 + h * 4096}"); P(f"s_add_u32 s60, s49, {u * 8192 + h * 4096}")
                for i in range(4):
                    P(f"buffer_load_dwordx4 v{2 + 4 * h + i}, s[32:35], s60 offen offset:{i * 1024} {kf} lds")
        return f
    def iss_v(v):
        def f():
            for h in range(2):
                P(f"s_mov_b32 m0, {vslot(v) + h * 4096}"); P(f"s_add_u32 s60, s49, {v * 8192 + h * 4096}")
                for i in range(4):
                    P(f"buffer_load_dwordx4 v{24 + i}, s[36:39], s60 offen offset:{i * 1024} {kf} lds")
        return f
    def pre_k(u):
        if u < NSLOT: return None
        o = u - NSLOT
        return lambda: lds_wait("v15", F_CONS + 4 * (o & 3), (o >> 2) + 1, "v17")
    def pre_v(v):
        if v < 12:
            o = v + 4
            return lambda: lds_wait("v15", F_CONS + 4 * (o & 3), (o >> 2) + 1, "v17")
        if v == 12: return lambda: lds_wait("v15", F_WQFREE, 1, "v17")
        if v == 14: return lambda: lds_wait("v15", F_GUFREE, 1, "v17")
        return None
    segs = [("wq", tile(14, WQS, "v11", 40, "s51", 8192), 14, F_LWQ, 1, None)]
    for u in range(16):
        segs.append((f"k{u}", iss_k(u), 8, F_LK, u + 1, pre_k(u)))
        if u == cfg.gu_after - 1: segs.append(("gu", tile(14, GUS, "v12", 68, "s54", 3584), 14, F_LGU, 1, None))
        if u == cfg.wd_after - 1: segs.append(("wd", tile(8, WDS, "v13", 44, "s57", 896), 8, F_LWD, 1, None))
    for v in range(16):
        if v == cfg.wo_after: segs.append(("wo", tile(16, WOS, "v13", 64, "s58", 896), 16, F_LWO, 1, None))
        segs.append((f"v{v}", iss_v(v), 8, F_LV, v + 1, pre_v(v)))
    issued = 0; ends = []; sig = 0
    for si, (name, fn, n, fo, fv, pre) in enumerate(segs):
        P.comment(f"--- segment {name}")
        if pre:
            pre()
        fn(); issued += n; ends.append(issued)
        if si == 0:
            P("s_barrier"); stamp(2)
        if si == 1: late_setup()
        if issued > cfg.W:
            done = issued - cfg.W
            P(f"s_waitcnt vmcnt({cfg.W})")
            last = {}
            while sig < len(ends) and ends[sig] <= done:
                last[segs[sig][3]] = segs[sig][4]
                if segs[sig][0] in LSTAMP: stamp(LSTAMP[segs[sig][0]])
                sig += 1
            for fo2, fv2 in last.items(): lds_set("v15", fo2, fv2, "v16")
    while sig < len(segs):
        rem = issued - ends[sig]
        P(f"s_waitcnt vmcnt({rem})")
        lds_set("v15", segs[sig][3], segs[sig][4], "v16")
        if segs[sig][0] in LSTAMP: stamp(LSTAMP[segs[sig][0]])
        sig += 1
    P("s_waitcnt lgkmcnt(0)")
    dump_stamps()
    P("s_endpgm")

def tile_baddr(dst, t, base, tmp):
    P(f"v_bfe_u32 {tmp}, v1, 3, 2"); P(f"v_xor_b32 {tmp}, {t}, {tmp}"); P(f"v_lshlrev_b32 {tmp}, 5, {tmp}")
    P(f"v_lshrrev_b32 {dst}, 2, v1"); P(f"v_lshl_add_u32 {dst}, {dst}, 7, {tmp}")
    P(f"v_and_b32 {tmp}, 3, v1"); P(f"v_lshl_add_u32 {dst}, {tmp}, 3, {dst}"); P(f"v_add_u32 {dst}, {base}, {dst}")

def compute():
    P.comment("================= COMPUTE waves (1..4) =================")
    P("L_C:")
    P(f"s_sub_u32 {S_W}, s3, 1")
    for r in range(4, 8): P(f"v_mov_b32 v{r}, 0")
    P(f"s_mul_i32 s34, {S_W}, 896")
    P("v_lshlrev_b32 v2, 4, v1"); P("v_add_u32 v2, s34, v2")
    P("v_cmp_gt_u32 vcc, 56, v1")
    P("s_mov_b64 s[36:37], vcc")
    P("v_mul_u32_u24 v8, 37, v1"); P("v_lshrrev_b32 v8, 9, v8")
    P("v_mul_u32_u24 v9, 14, v8"); P("v_sub_u32 v9, v1, v9")
    P("v_lshrrev_b32 v3, 2, v9"); P("v_lshlrev_b32 v3, 6, v3")
    P("v_and_b32 v10, 1, v9"); P("v_lshl_add_u32 v3, v10, 5, v3")
    P("v_bfe_u32 v10, v9, 1, 1"); P("v_lshl_add_u32 v3, v10, 3, v3")
    P("v_lshl_add_u32 v3, v8, 8, v3")
    P(f"s_mul_i32 s34, {S_W}, {XSTR}"); P(f"s_add_u32 s34, s34, {XNQ}"); P("v_add_u32 v3, s34, v3")
    P("s_waitcnt lgkmcnt(0)")
    P("s_mov_b64 exec, s[36:37]")
    P(f"global_load_dwordx4 v[4:7], v2, {X_}")
    P("s_mov_b64 exec, -1")
    P("s_barrier")
    ws_srd()
    tag_consts()
    P(f"v_mov_b32 v15, {FL}")
    P("v_lshrrev_b32 v11, 4, v1"); P("v_and_b32 v12, 15, v1")
    P("s_waitcnt vmcnt(0)")
    stamp(1)
    for i in range(4):
        P(f"v_lshlrev_b32 v{16 + 2 * i}, 16, v{4 + i}"); P(f"v_and_b32 v{17 + 2 * i}, 0xffff0000, v{4 + i}")
    P("v_add_f32 v24, v16, v17"); P("v_add_f32 v25, v18, v19"); P("v_add_f32 v26, v20, v21"); P("v_add_f32 v27, v22, v23")
    P("v_add_f32 v24, v24, v25"); P("v_add_f32 v26, v26, v27"); P("v_add_f32 v24, v24, v26")
    allsum("v24", "v25")
    P("v_mul_f32 v24, 0x3b124925, v24")
    P("v_mov_b32 v26, 0")
    P("s_mov_b64 exec, s[36:37]")
    for i in range(8):
        P(f"v_sub_f32 v27, v{16 + i}, v24"); P("v_fmac_f32 v26, v27, v27")
    P("s_mov_b64 exec, -1")
    allsum("v26", "v25")
    P("v_mul_f32 v26, 0x3b124925, v26")
    P("v_cvt_pk_bf16_f32 v27, v24, v26")
    P("v_lshlrev_b32 v24, 16, v27"); P("v_and_b32 v26, 0xffff0000, v27")
    P("v_add_f32 v26, 0x3727c5ac, v26")
    P("v_cvt_pk_bf16_f32 v26, v26, v26"); P("v_and_b32 v26, 0xffff0000, v26")
    P("v_sqrt_f32 v26, v26")
    P("v_cvt_pk_bf16_f32 v26, v26, v26"); P("v_and_b32 v26, 0xffff0000, v26")
    P("v_rcp_f32 v27, v26")
    for i in range(0, 8, 2):
        P(f"v_sub_f32 v32, v{16 + i}, v24"); P(f"v_sub_f32 v33, v{17 + i}, v24")
        P("v_cvt_pk_bf16_f32 v32, v32, v33")
        P("v_and_b32 v33, 0xffff0000, v32"); P("v_lshlrev_b32 v32, 16, v32")
        P("v_mul_f32 v34, v32, v27"); P("v_mul_f32 v35, v33, v27")
        P("v_fma_f32 v36, -v34, v26, v32"); P("v_fma_f32 v37, -v35, v26, v33")
        P("v_fmac_f32 v34, v36, v27"); P("v_fmac_f32 v35, v37, v27")
        P(f"v_cvt_pk_bf16_f32 v{40 + i // 2}, v34, v35")
    P("s_mov_b64 exec, s[36:37]")
    P("ds_write_b64 v3, v[40:41]"); P("ds_write_b64 v3, v[42:43] offset:16")
    P("s_mov_b64 exec, -1")
    P("s_waitcnt lgkmcnt(0)")
    lds_inc("v15", F_XN, "v16")
    stamp(2)
    P(f"s_lshl_b32 s34, {S_KVH}, 16"); P(f"s_lshr_b32 s35, {S_W}, 1"); P("s_lshl_b32 s35, s35, 14"); P("s_add_u32 s34, s34, s35")
    P(f"s_lshl_b32 s35, {S_B}, 12"); P("s_add_u32 s34, s34, s35"); P(f"s_lshl_b32 s35, {S_S}, 9"); P("s_add_u32 s34, s34, s35")
    P(f"s_and_b32 s35, {S_W}, 1"); P("s_lshl_b32 s35, s35, 8"); P("s_add_u32 s34, s34, s35"); P(f"s_add_u32 s34, s34, {WS_OP}")
    P("v_lshlrev_b32 v112, 6, v11"); P("v_and_b32 v7, 12, v12"); P("v_lshl_add_u32 v112, v7, 2, v112"); P("v_add_u32 v112, s34, v112")
    P("v_add_u32 v113, 0x8000, v112")
    P(f"s_lshl_b32 s34, {S_KVH}, 10"); P(f"s_lshl_b32 s35, {S_B}, 7"); P("s_add_u32 s34, s34, s35"); P(f"s_lshl_b32 s35, {S_S}, 4"); P("s_add_u32 s34, s34, s35"); P(f"s_add_u32 s34, s34, {WS_ST}")
    P("v_and_b32 v7, 1, v1"); P("v_lshlrev_b32 v7, 9, v7"); P("v_add_u32 v114, s34, v7")
    P("s_mov_b32 s54, 0x11111111"); P("s_mov_b32 s55, 0x11111111")
    if cfg.pretouch:
        for r in range(116, 120): P(f"v_mov_b32 v{r}, 0")
        P("s_mov_b64 exec, s[54:55]")
        P(f"global_store_dwordx4 v112, v[116:119], {WS_}"); P(f"global_store_dwordx4 v113, v[116:119], {WS_}")
        P("s_mov_b64 exec, -1")
        Lp = lbl("pt")
        P(f"s_cmp_lg_u32 {S_W}, 0"); P(f"s_cbranch_scc1 {Lp}")
        P("s_mov_b64 exec, 3"); P(f"global_store_dwordx4 v114, v[116:119], {WS_}"); P("s_mov_b64 exec, -1")
        P(f"{Lp}:")
    P(f"s_lshl_b32 s34, {S_W}, 13")
    for k in range(4):
        P(f"v_add_u32 v7, {4 * k}, v11"); P("v_xor_b32 v7, v7, v12"); P("v_lshlrev_b32 v7, 4, v7")
        P(f"v_lshl_add_u32 v{2 + k}, v12, 9, v7"); P(f"v_add_u32 v{2 + k}, s34, v{2 + k}")
    P(f"s_add_u32 s46, {S_W}, 1")
    P(f"s_lshl_b32 s47, {S_W}, 2"); P(f"v_mov_b32 v9, s47"); P(f"v_add_u32 v9, {FL}, v9")
    for m in range(4):
        lds_wait("v15", F_LK, "s46", "v8", sleep=1)
        for ks in range(8):
            R = 128 + 32 * m + 4 * ks
            P(f"ds_read_b128 v[{R}:{R + 3}], v{2 + (ks & 3)} offset:{(ks >> 2) * 256 + (m % 3) * 32768 if m < 3 and m * 32768 < 65536 else (ks >> 2) * 256}") if False else None
            off = (ks >> 2) * 256 + ((4 * m) % NSLOT) * 8192
            if off < 65536:
                P(f"ds_read_b128 v[{R}:{R + 3}], v{2 + (ks & 3)} offset:{off}")
            else:
                P(f"ds_read_b128 v[{R}:{R + 3}], v{20 + (ks & 3)} offset:{off - 65536}")
        P("s_waitcnt lgkmcnt(0)")
        lds_set("v9", F_CONS, m + 1, "v8")
        if m == 0:
            for k in range(4): P(f"v_add_u32 v{20 + k}, 0x10000, v{2 + k}")
        if m < 3: P("s_add_u32 s46, s46, 4")
    stamp(3)
    P("v_lshlrev_b32 v13, 7, v11"); P("v_lshrrev_b32 v7, 2, v12"); P("v_lshl_add_u32 v13, v7, 4, v13"); P("v_and_b32 v7, 3, v12"); P("v_lshl_add_u32 v13, v7, 1, v13")
    P(f"s_lshr_b32 s34, {S_W}, 1"); P("s_lshl_b32 s34, s34, 6"); P(f"s_and_b32 s35, {S_W}, 1"); P("s_lshl_b32 s35, s35, 3"); P("s_add_u32 s34, s34, s35"); P(f"s_add_u32 s34, s34, {PL}")
    P("v_add_u32 v13, s34, v13")
    lds_wait("v15", F_Q, 1, "v16", sleep=1)
    P(f"ds_read_b64 v[16:17], v15 offset:{F_TAG}")
    P("v_and_b32 v4, 1, v1"); P("v_lshlrev_b32 v4, 9, v4"); P("v_lshl_add_u32 v4, v11, 4, v4"); P(f"v_add_u32 v4, {QL}, v4")
    for ks in range(8): P(f"ds_read_b128 v[{64 + 4 * ks}:{67 + 4 * ks}], v4 offset:{ks * 64}")
    P("s_waitcnt lgkmcnt(8)")
    P("v_mov_b32 v14, v16")
    P(f"v_readfirstlane_b32 {S_MODE}, v17")
    P(f"s_sub_u32 {S_MODE}, {S_MODE}, 1")
    stamp(4)
    for ks in range(8):
        P(f"s_waitcnt lgkmcnt({7 - ks})")
        for m in range(4):
            R = 128 + 32 * m + 4 * ks
            c = "0" if ks == 0 else f"v[{16 + 4 * m}:{19 + 4 * m}]"
            P(f"v_mfma_f32_16x16x32_bf16 v[{16 + 4 * m}:{19 + 4 * m}], v[{64 + 4 * ks}:{67 + 4 * ks}], v[{R}:{R + 3}], {c}")
    rowsel("v16", ["v16", "v20", "v24", "v28"])
    rowsel("v17", ["v17", "v21", "v25", "v29"])
    P("v_cvt_pk_bf16_f32 v20, v16, v17")
    P("v_lshlrev_b32 v16, 16, v20"); P("v_and_b32 v17, 0xffff0000, v20")
    P("v_max_f32 v32, 0xff7fffff, v16"); P("v_max_f32 v33, 0xff7fffff, v17")
    allred2("v32", "v33", "v36", "v37", "v_max_f32")
    P("s_mov_b32 s50, 0x3db8aa3b")
    P("v_sub_f32 v16, v16, v32"); P("v_sub_f32 v17, v17, v33")
    P("v_mul_f32 v16, s50, v16"); P("v_mul_f32 v17, s50, v17")
    P("v_exp_f32 v16, v16"); P("v_exp_f32 v17, v17")
    P("v_mov_b32 v34, v16"); P("v_mov_b32 v35, v17")
    allred2("v34", "v35", "v36", "v37", "v_add_f32")
    P(f"s_lshl_b32 s34, {S_W}, 4"); P(f"s_add_u32 s34, s34, {STATS}"); P("v_mov_b32 v36, s34")
    P("s_mov_b64 exec, 1")
    P("ds_write_b128 v36, v[32:35]")
    P("s_mov_b64 exec, -1")
    P("s_waitcnt lgkmcnt(0)")
    lds_inc("v15", F_BS, "v37")
    P("v_lshrrev_b32 v2, 2, v1"); P("v_bfe_u32 v3, v1, 2, 3")
    P(f"s_lshl_b32 s34, {S_W}, 2")
    for tt in range(4):
        P(f"s_add_u32 s35, s34, {tt}"); P("v_xor_b32 v4, s35, v3"); P("v_lshlrev_b32 v4, 5, v4"); P(f"v_lshl_add_u32 v{40 + tt}, v2, 9, v4")
        P("v_and_b32 v4, 3, v1"); P(f"v_lshl_add_u32 v{40 + tt}, v4, 3, v{40 + tt}"); P(f"v_add_u32 v{44 + tt}, 0x10000, v{40 + tt}")
    P("v_and_b32 v2, 1, v1"); P(f"v_mul_u32_u24 v8, {PSTR}, v2"); P("v_lshl_add_u32 v8, v11, 4, v8"); P(f"v_add_u32 v8, {PL}, v8")
    lds_wait("v15", F_BS, 4, "v37")
    P(f"v_mov_b32 v36, {STATS}")
    for k in range(4): P(f"ds_read_b128 v[{48 + 4 * k}:{51 + 4 * k}], v36 offset:{16 * k}")
    P("s_waitcnt lgkmcnt(0)")
    P("v_max3_f32 v28, v48, v52, v56"); P("v_max_f32 v28, v28, v60")
    P("v_max3_f32 v29, v49, v53, v57"); P("v_max_f32 v29, v29, v61")
    for k in range(4):
        P(f"v_sub_f32 v{48 + 4 * k}, v{48 + 4 * k}, v28"); P(f"v_sub_f32 v{49 + 4 * k}, v{49 + 4 * k}, v29")
    P("v_sub_f32 v32, v32, v28"); P("v_sub_f32 v33, v33, v29")
    for k in range(4):
        P(f"v_mul_f32 v{48 + 4 * k}, s50, v{48 + 4 * k}"); P(f"v_mul_f32 v{49 + 4 * k}, s50, v{49 + 4 * k}")
    P("v_mul_f32 v32, s50, v32"); P("v_mul_f32 v33, s50, v33")
    for k in range(4):
        P(f"v_exp_f32 v{48 + 4 * k}, v{48 + 4 * k}"); P(f"v_exp_f32 v{49 + 4 * k}, v{49 + 4 * k}")
    P("v_exp_f32 v32, v32"); P("v_exp_f32 v33, v33")
    P("v_mul_f32 v30, v48, v50"); P("v_mul_f32 v31, v49, v51")
    for k in range(1, 4):
        P(f"v_fmac_f32 v30, v{48 + 4 * k}, v{50 + 4 * k}"); P(f"v_fmac_f32 v31, v{49 + 4 * k}, v{51 + 4 * k}")
    P("v_mul_f32 v16, v16, v32"); P("v_mul_f32 v17, v17, v33")
    P("v_cvt_pk_bf16_f32 v20, v16, v17")
    P("ds_write_b16 v13, v20"); P(f"ds_write_b16_d16_hi v13, v20 offset:{PSTR}")
    P("s_waitcnt lgkmcnt(0)")
    lds_inc("v15", F_BP, "v37")
    Ln = lbl("nst")
    P(f"s_cmp_lg_u32 {S_W}, 0"); P(f"s_cbranch_scc1 {Ln}")
    P("v_and_b32 v2, 1, v1"); P("v_cmp_eq_u32 vcc, 1, v2")
    P("v_cndmask_b32 v32, v28, v29, vcc"); P("v_cndmask_b32 v33, v30, v31, vcc"); P("v_mov_b32 v34, 0"); P("v_mov_b32 v35, 0")
    for k in range(4): P(f"v_perm_b32 v{32 + k}, v{32 + k}, v14, s{72 + k}")
    P("s_mov_b64 exec, 3")
    store_mode(f"global_store_dwordx4 v114, v[32:35], {WS_}", "mode")
    P("s_mov_b64 exec, -1")
    P(f"{Ln}:")
    t4_ids("s56", "s57", "s34")
    P(f"s_lshl_b32 s34, {S_KVH}, 16"); P("s_lshl_b32 s35, s56, 14"); P("s_add_u32 s34, s34, s35"); P(f"s_lshl_b32 s35, {S_W}, 12"); P("s_add_u32 s34, s34, s35"); P(f"s_add_u32 s34, s34, {WS_OP}")
    P("v_lshlrev_b32 v120, 4, v1"); P("v_add_u32 v120, s34, v120")
    P(f"s_lshl_b32 s34, {S_KVH}, 10"); P("s_lshr_b32 s35, s56, 1"); P("s_lshl_b32 s35, s35, 9"); P("s_add_u32 s34, s34, s35"); P(f"s_lshl_b32 s35, {S_W}, 7"); P("s_add_u32 s34, s34, s35"); P(f"s_add_u32 s34, s34, {WS_ST}")
    P("v_and_b32 v124, 7, v1"); P("v_lshlrev_b32 v124, 4, v124"); P("v_add_u32 v124, s34, v124")
    P("v_bfe_u32 v121, v1, 3, 2"); P("v_lshlrev_b32 v121, 6, v121"); P("v_and_b32 v5, 3, v1"); P("v_lshl_add_u32 v121, v5, 4, v121"); P("v_bfe_u32 v5, v1, 2, 1"); P("v_lshl_add_u32 v121, v5, 3, v121")
    P(f"s_mul_i32 s34, {S_W}, {OSTR}"); P(f"s_add_u32 s34, s34, {OL}"); P("v_add_u32 v121, s34, v121")
    P("v_and_b32 v122, 3, v1"); P(f"v_mul_u32_u24 v122, {OSTR}, v122"); P("v_lshl_add_u32 v122, v11, 4, v122"); P(f"v_add_u32 v122, {OL}, v122")
    P(f"s_lshl_b32 s34, {S_KVH}, 2"); P("s_add_u32 s34, s34, s56"); P("s_lshl_b32 s34, s34, 8"); P("s_lshl_b32 s35, s57, 13"); P("s_add_u32 s34, s34, s35")
    P(f"s_lshl_b32 s35, {S_W}, 6"); P("s_add_u32 s34, s34, s35"); P(f"s_add_u32 s34, s34, {WS_Y}")
    P("v_mul_u32_u24 v123, 7168, v11"); P("v_lshlrev_b32 v123, 3, v123"); P("v_and_b32 v5, 12, v12"); P("v_lshl_add_u32 v123, v5, 2, v123"); P("v_add_u32 v123, s34, v123")
    lds_wait("v15", F_BP, 4, "v37")
    stamp(5)
    def pv_read(ks, S):
        for half in range(2):
            for tt in range(4):
                off = vslot(2 * ks + half)
                a = f"v{40 + tt}" if off < 65536 else f"v{44 + tt}"
                P(f"ds_read_b64_tr_b16 v[{S + 4 * tt + 2 * half}:{S + 4 * tt + 2 * half + 1}], {a} offset:{off % 65536}")
        P(f"ds_read_b128 v[{S + 16}:{S + 19}], v8 offset:{ks * 64}")
    def pv_mfma(ks, S):
        for tt in range(4):
            c = "0" if ks == 0 else f"v[{16 + 4 * tt}:{19 + 4 * tt}]"
            P(f"v_mfma_f32_16x16x32_bf16 v[{16 + 4 * tt}:{19 + 4 * tt}], v[{S + 16}:{S + 19}], v[{S + 4 * tt}:{S + 4 * tt + 3}], {c}")
    P("s_mov_b32 s52, 0")
    def wait_lv(n):
        Ls = lbl("lv")
        P(f"s_cmp_ge_u32 s52, {n}"); P(f"s_cbranch_scc1 {Ls}")
        lds_wait("v15", F_LV, n, "v2")
        P(f"s_mov_b32 s52, {S_T}")
        P(f"{Ls}:")
    SETS = (48, 68)
    wait_lv(2)
    pv_read(0, SETS[0])
    for ks in range(8):
        if ks + 1 < 8:
            wait_lv(2 * ks + 4)
            pv_read(ks + 1, SETS[(ks + 1) & 1])
            P("s_waitcnt lgkmcnt(9)")
        else:
            P("s_waitcnt lgkmcnt(0)")
        pv_mfma(ks, SETS[ks & 1])
        if ks == 5:
            lds_wait("v15", F_LWO, 1, "v2")
            tile_baddr("v3", S_W, WOS, "v4")
            for k4 in range(4):
                P(f"ds_read_b64_tr_b16 v[{96 + 4 * k4}:{97 + 4 * k4}], v3 offset:{k4 * 4096}")
                P(f"ds_read_b64_tr_b16 v[{98 + 4 * k4}:{99 + 4 * k4}], v3 offset:{k4 * 4096 + 2048}")
            P("s_waitcnt lgkmcnt(0)")
        if ks == 3:
            P(f"global_load_dwordx4 v[116:119], v124, {WS_} sc1")
        if ks == 6:
            Lw = lbl("stok")
            P("s_waitcnt vmcnt(0)")
            check_granules([116], "v14", 126)
            P(f"s_cbranch_scc1 {Lw}")
            poll_loop("stg", lambda: P(f"global_load_dwordx4 v[116:119], v124, {WS_} sc1"), lambda: check_granules([116], "v14", 126))
            P(f"{Lw}:")
            P("v_and_b32 v116, 0xffffff00, v116"); P("v_and_b32 v117, 0xffffff00, v117")
            P("v_mov_b32 v118, v116")
            for r in (1, 2, 4): P(f"v_max_f32_dpp v118, v118, v118 row_ror:{r} row_mask:0xf bank_mask:0xf")
            P("v_sub_f32 v116, v116, v118"); P("v_mul_f32 v116, s50, v116"); P("v_exp_f32 v116, v116")
            P("v_mul_f32 v119, v116, v117")
            for r in (1, 2, 4): P(f"v_add_f32_dpp v119, v119, v119 row_ror:{r} row_mask:0xf bank_mask:0xf")
            P("v_rcp_f32 v119, v119")
            P("v_mul_f32 v116, v116, v119")
            for s_ in range(8): P(f"v_readlane_b32 s{60 + s_}, v116, {s_}")
            P("s_mov_b32 s44, 0"); P("s_mov_b32 s45, -1")
            for u in range(4):
                P(f"v_mov_b32 v{116 + u}, s{60 + 2 * u}"); P(f"v_mov_b32 v126, s{61 + 2 * u}")
                P(f"v_cndmask_b32 v{116 + u}, v{116 + u}, v126, s[44:45]")
    stamp(6)
    rowsel("v16", ["v16", "v20", "v24", "v28"])
    rowsel("v17", ["v17", "v21", "v25", "v29"])
    quad_pack_store("v16", 32, "v14", "v112", 0, "mode", "s[54:55]")
    quad_pack_store("v17", 36, "v14", "v113", 0, "mode", "s[54:55]")
    stamp(7)
    P(f"s_cmp_ge_u32 {S_J}, 28"); P("s_cbranch_scc1 L_C_end")
    def o_loads():
        for u in range(4): P(f"global_load_dwordx4 v[{48 + 4 * u}:{51 + 4 * u}], v120, {WS_} offset:{u * 1024} sc1")
    poll_loop("og", o_loads, lambda: check_granules([48, 52, 56, 60], "v14", 68), sleep=0)
    stamp(8)
    mask_payload(range(48, 64))
    for u in range(4):
        for r in range(4):
            if u == 0: P(f"v_mul_f32 v{72 + r}, v{48 + r}, v116")
            else: P(f"v_fmac_f32 v{72 + r}, v{48 + 4 * u + r}, v{116 + u}")
    for r in range(4): P(f"v_mov_b32 v{76 + r}, v{72 + r}")
    for r in range(4): P(f"v_permlane32_swap_b32 v{72 + r}, v{76 + r}")
    for r in range(4): P(f"v_add_f32 v{72 + r}, v{72 + r}, v{76 + r}")
    P("v_cvt_pk_bf16_f32 v72, v72, v73"); P("v_cvt_pk_bf16_f32 v73, v74, v75")
    P("s_mov_b32 exec_lo, -1"); P("s_mov_b32 exec_hi, 0")
    P("ds_write_b64 v121, v[72:73]")
    P("s_mov_b64 exec, -1")
    P("s_waitcnt lgkmcnt(0)")
    lds_inc("v15", F_BO, "v68")
    lds_wait("v15", F_BO, 4, "v68")
    for k4 in range(4): P(f"ds_read_b128 v[{48 + 4 * k4}:{51 + 4 * k4}], v122 offset:{k4 * 64}")
    for k4 in range(4):
        P(f"s_waitcnt lgkmcnt({3 - k4})")
        c = "0" if k4 == 0 else "v[16:19]"
        P(f"v_mfma_f32_16x16x32_bf16 v[16:19], v[{48 + 4 * k4}:{51 + 4 * k4}], v[{96 + 4 * k4}:{99 + 4 * k4}], {c}")
    rowsel("v16", ["v16", "v17", "v18", "v19"])
    quad_pack_store("v16", 32, "v14", "v123", 0, "sc1", "s[54:55]")
    lds_inc("v15", F_YPUB, "v68")
    stamp(9)
    P("L_C_end:")
    P("s_waitcnt vmcnt(0) lgkmcnt(0)")
    stamp(10)
    dump_stamps()
    P("s_endpgm")

def tile_gemm(abase_reg, bbase, nks, acc0=16, F0=32, mid=None):
    for ks in range(nks): P(f"ds_read_b128 v[{F0 + 4 * ks}:{F0 + 4 * ks + 3}], {abase_reg} offset:{ks * 64}")
    B0 = F0 + 4 * nks
    for t in range(4):
        tile_baddr("v7", t, bbase, "v8")
        for ks in range(nks):
            S = B0 + 4 * (t * nks + ks)
            P(f"ds_read_b64_tr_b16 v[{S}:{S + 1}], v7 offset:{ks * 4096}")
            P(f"ds_read_b64_tr_b16 v[{S + 2}:{S + 3}], v7 offset:{ks * 4096 + 2048}")
    P("s_waitcnt lgkmcnt(0)")
    if mid: mid()
    for ks in range(nks):
        for t in range(4):
            S = B0 + 4 * (t * nks + ks)
            c = "0" if ks == 0 else f"v[{acc0 + 4 * t}:{acc0 + 4 * t + 3}]"
            P(f"v_mfma_f32_16x16x32_bf16 v[{acc0 + 4 * t}:{acc0 + 4 * t + 3}], v[{F0 + 4 * ks}:{F0 + 4 * ks + 3}], v[{S}:{S + 3}], {c}")
def publish_tiles(vaddr, flags):
    for t in range(4):
        a = 16 + 4 * t
        rowsel(f"v{a}", [f"v{a}", f"v{a + 1}", f"v{a + 2}", f"v{a + 3}"])
        quad_pack_store(f"v{a}", 112 + 4 * t, "v14", vaddr, t * 64, flags, "s[36:37]")

def f_common():
    ws_srd()
    tag_consts()
    P(f"v_mov_b32 v15, {FL}")
    P("v_lshrrev_b32 v11, 4, v1"); P("v_and_b32 v12, 15, v1")
    P("s_mov_b32 s36, 0x11111111"); P("s_mov_b32 s37, 0x11111111")
    P(f"v_and_b32 v2, 3, v1"); P(f"v_mul_u32_u24 v2, {XSTR}, v2"); P("v_lshl_add_u32 v2, v11, 4, v2"); P(f"v_add_u32 v2, {XNQ}, v2")
def scalar_flag_poll(name, base_s, nflags, exp_pair, rounds, sleep):
    Lg = lbl(name); Ld = lbl(name + "d"); Lr = lbl(name + "r"); Lok = lbl(name + "k")
    P(f"s_add_u32 s38, s30, {base_s}"); P("s_addc_u32 s39, s31, 0")
    P(f"s_mov_b32 {S_SPIN}, {rounds}")
    P(f"{Lg}:")
    if nflags == 32:
        P("s_load_dwordx16 s[40:55], s[38:39], 0 glc"); P("s_load_dwordx16 s[56:71], s[38:39], 64 glc")
    else:
        P("s_load_dwordx8 s[40:47], s[38:39], 0 glc")
    P("s_waitcnt lgkmcnt(0)")
    for k in range(0, nflags, 2):
        P(f"s_cmp_eq_u64 s[{40 + k}:{41 + k}], {exp_pair}"); P(f"s_cbranch_scc0 {Lr}")
    P(f"s_branch {Lok}")
    P(f"{Lr}:")
    P(f"s_sub_u32 {S_SPIN}, {S_SPIN}, 1"); P(f"s_cbranch_scc1 {Ld}")
    if sleep: P(f"s_sleep {sleep}")
    P(f"s_branch {Lg}")
    P(f"{Ld}:")
    P("s_cmp_eq_u32 s38, -1")
    P("s_cmp_lg_u32 s38, s38")
    P(f"s_branch {Lok}_x")
    P(f"{Lok}:")
    P("s_cmp_eq_u32 s38, s38")
    P(f"{Lok}_x:")

def f1_wave():
    P.comment("================= F1 wave (5): T1, q gather, mode =================")
    P("L_F:")
    for r in range(4, 8): P(f"v_mov_b32 v{r}, 0")
    P("v_lshlrev_b32 v2, 4, v1")
    P(f"v_add_u32 v3, {XNQ}, v2")
    for i in range(4): P(f"ds_write_b128 v3, v[4:7] offset:{i * 1024}")
    P("s_mov_b64 exec, 0xffff"); P(f"ds_write_b128 v3, v[4:7] offset:4096")
    P("s_mov_b64 exec, 0xff"); P(f"v_add_u32 v3, {FL}, v2"); P("ds_write_b128 v3, v[4:7]"); P("s_mov_b64 exec, -1")
    P(f"v_add_u32 v3, {WQS + 112 * 128}, v2"); P("ds_write_b128 v3, v[4:7]"); P("ds_write_b128 v3, v[4:7] offset:1024")
    P(f"v_add_u32 v3, {GUS + 112 * 128}, v2"); P("ds_write_b128 v3, v[4:7]"); P("ds_write_b128 v3, v[4:7] offset:1024")
    P("s_waitcnt lgkmcnt(0)")
    P(f"s_lshl_b32 s34, {S_KVH}, 7"); P("s_add_u32 s38, s30, s34"); P("s_addc_u32 s39, s31, 0")
    P(f"s_load_dword {S_TAG}, s[38:39], {WS_NONCE}")
    P("s_barrier")
    f_common()
    P(f"s_lshr_b32 s34, {S_J}, 3"); P("s_lshl_b32 s34, s34, 8"); P("v_add_u32 v3, s34, v2")
    P(f"s_lshl_b32 s34, {S_KVH}, 15"); P(f"s_lshr_b32 s35, {S_J}, 3"); P("s_lshl_b32 s35, s35, 11"); P("s_add_u32 s34, s34, s35")
    P(f"s_and_b32 s35, {S_J}, 7"); P("s_lshl_b32 s35, s35, 8"); P("s_add_u32 s34, s34, s35"); P(f"s_add_u32 s34, s34, {WS_QP}")
    P("v_lshlrev_b32 v9, 13, v11"); P("v_and_b32 v10, 12, v12"); P("v_lshl_add_u32 v9, v10, 2, v9"); P("v_add_u32 v9, s34, v9")
    P(f"s_lshl_b32 s34, {S_KVH}, 15"); P(f"s_lshl_b32 s35, {S_B}, 13"); P("s_add_u32 s34, s34, s35"); P(f"s_add_u32 s34, s34, {WS_QP}")
    P("v_lshlrev_b32 v10, 4, v1"); P("v_add_u32 v10, s34, v10"); P("v_add_u32 v13, 4096, v10")
    P("s_getreg_b32 s79, hwreg(HW_REG_XCC_ID, 0, 4)")
    P("s_lshl_b32 s79, s79, 1")
    if cfg.force_remote: P(f"s_lshl_b32 s34, {S_J}, 1"); P("s_and_b32 s79, s34, 14")
    P("s_waitcnt lgkmcnt(0)")
    P(f"s_mul_i32 {S_TAG}, {S_TAG}, 0x9E3779B1"); P(f"s_add_u32 {S_TAG}, {S_TAG}, 0x7F4A7C15"); P(f"s_or_b32 {S_TAG}, {S_TAG}, 1")
    P(f"v_mov_b32 v14, {S_TAG}")
    lds_set("v15", F_TAG, S_TAG, "v16")
    Ln = lbl("nl")
    P(f"s_cmp_lg_u32 {S_J}, 0"); P(f"s_cbranch_scc1 {Ln}")
    P("s_mov_b64 exec, 1")
    P(f"s_lshl_b32 s34, {S_KVH}, 2"); P("v_mov_b32 v16, s34")
    P(f"global_store_dword v16, v14, {DBG_} sc1")
    P("s_mov_b64 exec, -1")
    P(f"{Ln}:")
    P(f"s_xor_b32 s79, {S_TAG}, s79")
    P("v_mov_b32 v6, v14"); P("v_mov_b32 v14, s79")
    lds_wait("v15", F_XN, 4, "v16")
    lds_wait("v15", F_LWQ, 1, "v16")
    stamp(1)
    tile_gemm("v3", WQS, 4, mid=lambda: lds_set("v15", F_WQFREE, 1, "v8"))
    publish_tiles("v9", "")
    stamp(2)
    if cfg.qdelay: P(f"s_sleep {cfg.qdelay}")
    def q_loads():
        for r4 in range(4):
            for u in range(2):
                o = r4 * 2048 + u * 1024
                a = "v10" if o < 4096 else "v13"
                P(f"global_load_dwordx4 v[{32 + 4 * (2 * r4 + u)}:{35 + 4 * (2 * r4 + u)}], {a}, {WS_} offset:{o % 4096} sc1")
    Lg = lbl("qg"); Ld = lbl("qgd"); Lnf = lbl("qnf")
    P(f"s_mov_b32 {S_SPIN}, {cfg.spin_bound >> 4}")
    P("s_mov_b32 s32, 0")
    P(f"{Lg}:")
    q_loads()
    P(f"s_sub_u32 {S_SPIN}, {S_SPIN}, 1"); P(f"s_cbranch_scc1 {Ld}")
    P("s_waitcnt vmcnt(0)")
    check_granules_x([32 + 4 * k for k in range(8)], "v14", 64)
    P(f"s_cbranch_scc1 {Ld}")
    P("s_add_u32 s32, s32, 1")
    P(f"s_cmp_lg_u32 s32, {cfg.f1_rounds}"); P(f"s_cbranch_scc1 {Lnf}")
    P("s_mov_b64 exec, s[36:37]")
    for t in range(4): P(f"global_store_dwordx4 v9, v[{112 + 4 * t}:{115 + 4 * t}], {WS_} offset:{t * 64} sc1")
    P("s_mov_b64 exec, -1")
    P(f"{Lnf}:")
    if cfg.psleep: P(f"s_sleep {cfg.psleep}")
    P(f"s_branch {Lg}")
    P(f"{Ld}:")
    P("s_waitcnt vmcnt(0)")
    P("v_cmp_eq_u32 s[40:41], 0, v66")
    P("s_cmp_eq_u64 s[40:41], -1")
    P(f"s_cselect_b32 {S_MODE}, 0, 1")
    Lloc = lbl("loc")
    P(f"s_cmp_eq_u32 {S_MODE}, 0"); P(f"s_cbranch_scc1 {Lloc}")
    P("s_mov_b64 exec, s[36:37]")
    for t in range(4): P(f"global_store_dwordx4 v9, v[{112 + 4 * t}:{115 + 4 * t}], {WS_} offset:{t * 64} sc1")
    P("s_mov_b64 exec, -1")
    P(f"{Lloc}:")
    P(f"s_add_u32 s34, {S_MODE}, 1")
    lds_set("v15", F_MODE, "s34", "v16")
    P("v_mov_b32 v14, v6")
    mask_payload(range(32, 64))
    for u in range(2):
        for r in range(4):
            P(f"v_add_f32 v{64 + 4 * u + r}, v{32 + 4 * u + r}, v{40 + 4 * u + r}")
            P(f"v_add_f32 v{72 + 4 * u + r}, v{48 + 4 * u + r}, v{56 + 4 * u + r}")
            P(f"v_add_f32 v{64 + 4 * u + r}, v{64 + 4 * u + r}, v{72 + 4 * u + r}")
        P(f"v_cvt_pk_bf16_f32 v{80 + 2 * u}, v{64 + 4 * u}, v{65 + 4 * u}"); P(f"v_cvt_pk_bf16_f32 v{81 + 2 * u}, v{66 + 4 * u}, v{67 + 4 * u}")
    P("v_lshlrev_b32 v25, 3, v1"); P(f"v_add_u32 v25, {QL}, v25")
    P("ds_write_b64 v25, v[80:81]"); P("ds_write_b64 v25, v[82:83] offset:512")
    P("s_waitcnt lgkmcnt(0)")
    lds_set("v15", F_Q, 1, "v16")
    stamp(3)
    Ln = lbl("nl2")
    P(f"s_cmp_lg_u32 {S_J}, 0"); P(f"s_cbranch_scc1 {Ln}")
    P("s_mov_b64 exec, 1")
    P(f"s_lshl_b32 s34, {S_KVH}, 7"); P("v_mov_b32 v24, s34")
    P(f"global_store_dword v24, v14, {WS_} offset:{WS_NONCE} sc1")
    P("s_mov_b64 exec, -1")
    P(f"{Ln}:")
    P("s_waitcnt vmcnt(0) lgkmcnt(0)")
    dump_stamps()
    P("s_endpgm")

def f2_wave():
    P.comment("================= F2 wave (6): T2, T3, reducer =================")
    P("L_G:")
    P("s_waitcnt lgkmcnt(0)")
    P("s_barrier")
    f_common()
    lds_wait("v15", F_TAG, 1, "v16", sleep=1)
    P(f"s_mov_b32 {S_TAG}, {S_T}"); P(f"v_mov_b32 v14, {S_T}")
    t2_ids("s56", "s57", "s58", "s59", "s34")
    P("s_cmp_ge_u32 s59, 28"); P("s_cbranch_scc1 L_G_not2")
    P("s_lshl_b32 s34, s58, 8"); P("v_add_u32 v3, s34, v2")
    P(f"s_lshl_b32 s34, {S_KVH}, 15"); P("s_lshl_b32 s35, s56, 13"); P("s_add_u32 s34, s34, s35"); P("s_lshl_b32 s35, s57, 12"); P("s_add_u32 s34, s34, s35")
    P("s_lshl_b32 s35, s58, 10"); P("s_add_u32 s34, s34, s35"); P(f"s_add_u32 s34, s34, {WS_GP}")
    P("v_lshlrev_b32 v9, 8, v11"); P("v_and_b32 v10, 12, v12"); P("v_lshl_add_u32 v9, v10, 2, v9"); P("v_add_u32 v9, s34, v9")
    lds_wait("v15", F_XN, 4, "v16", sleep=1)
    lds_wait("v15", F_LGU, 1, "v16", sleep=2)
    stamp(1)
    tile_gemm("v3", GUS, 4, mid=lambda: lds_set("v15", F_GUFREE, 1, "v8"))
    publish_tiles("v9", "")
    stamp(2)
    lds_wait("v15", F_MODE, 1, "v16", sleep=2)
    Lloc = lbl("loc2")
    P(f"s_cmp_eq_u32 {S_T}, 1"); P(f"s_cbranch_scc1 {Lloc}")
    P("s_mov_b64 exec, s[36:37]")
    for t in range(4): P(f"global_store_dwordx4 v9, v[{112 + 4 * t}:{115 + 4 * t}], {WS_} offset:{t * 64} sc1")
    P("s_mov_b64 exec, -1")
    P(f"{Lloc}:")
    P("s_branch L_G_t3")
    P("L_G_not2:")
    lds_set("v15", F_GUFREE, 1, "v8")
    P("L_G_t3:")
    t3_ids("s56", "s57", "s59", "s34")
    P(f"s_cmp_ge_u32 {S_J}, 28"); P("s_cbranch_scc1 L_G_red")
    P("s_cmp_ge_u32 s59, 28"); P("s_cbranch_scc1 L_G_red")
    P(f"s_lshl_b32 s34, {S_KVH}, 15"); P("s_lshl_b32 s35, s56, 13"); P("s_add_u32 s34, s34, s35"); P(f"s_add_u32 s34, s34, {WS_GP}")
    P("v_lshlrev_b32 v10, 4, v1"); P("v_add_u32 v10, s34, v10"); P("v_add_u32 v13, 4096, v10")
    lds_wait("v15", F_MODE, 1, "v16", sleep=2)
    stamp(3)
    def g_loads():
        for k in range(8):
            a = "v10" if k < 4 else "v13"
            P(f"global_load_dwordx4 v[{32 + 4 * k}:{35 + 4 * k}], {a}, {WS_} offset:{(k & 3) * 1024} sc1")
    poll_loop("gg", g_loads, lambda: check_granules([32 + 4 * k for k in range(8)], "v14", 64))
    mask_payload(range(32, 64))
    for r in range(4):
        P(f"v_add_f32 v{64 + r}, v{32 + r}, v{36 + r}"); P(f"v_add_f32 v{68 + r}, v{40 + r}, v{44 + r}"); P(f"v_add_f32 v{64 + r}, v{64 + r}, v{68 + r}")
        P(f"v_add_f32 v{72 + r}, v{48 + r}, v{52 + r}"); P(f"v_add_f32 v{76 + r}, v{56 + r}, v{60 + r}"); P(f"v_add_f32 v{72 + r}, v{72 + r}, v{76 + r}")
    for r in range(0, 4, 2):
        P(f"v_cvt_pk_bf16_f32 v80, v{64 + r}, v{65 + r}"); P(f"v_lshlrev_b32 v{64 + r}, 16, v80"); P(f"v_and_b32 v{65 + r}, 0xffff0000, v80")
        P(f"v_cvt_pk_bf16_f32 v81, v{72 + r}, v{73 + r}"); P(f"v_lshlrev_b32 v{72 + r}, 16, v81"); P(f"v_and_b32 v{73 + r}, 0xffff0000, v81")
    for r in range(4):
        P(f"v_cmp_lt_f32 vcc, 0, v{64 + r}")
        P(f"v_cndmask_b32 v80, 0, 1.0, vcc")
        P(f"v_mul_f32 v{64 + r}, v{64 + r}, v80"); P(f"v_mul_f32 v{64 + r}, v{64 + r}, v{72 + r}")
    P("v_cvt_pk_bf16_f32 v80, v64, v65"); P("v_cvt_pk_bf16_f32 v81, v66, v67")
    lds_wait("v15", F_WQFREE, 1, "v16")
    P("v_lshrrev_b32 v25, 3, v12"); P("v_lshlrev_b32 v25, 6, v25"); P("v_and_b32 v26, 3, v12"); P("v_lshl_add_u32 v25, v26, 4, v25")
    P("v_bfe_u32 v26, v12, 2, 1"); P("v_lshl_add_u32 v25, v26, 3, v25"); P("v_lshl_add_u32 v25, v11, 7, v25"); P(f"v_add_u32 v25, {HL}, v25")
    P("ds_write_b64 v25, v[80:81]")
    P("v_and_b32 v3, 3, v1"); P("v_lshlrev_b32 v3, 7, v3"); P("v_lshl_add_u32 v3, v11, 4, v3"); P(f"v_add_u32 v3, {HL}, v3")
    P("s_lshl_b32 s34, s57, 13"); P("s_lshl_b32 s35, s59, 8"); P("s_add_u32 s34, s34, s35"); P(f"s_add_u32 s34, s34, {WS_DP}")
    P("v_mul_u32_u24 v9, 7168, v11"); P("v_lshlrev_b32 v9, 3, v9"); P("v_and_b32 v10, 12, v12"); P("v_lshl_add_u32 v9, v10, 2, v9"); P("v_add_u32 v9, s34, v9")
    lds_wait("v15", F_LWD, 1, "v16", sleep=2)
    stamp(4)
    tile_gemm("v3", WDS, 2)
    publish_tiles("v9", "sc1")
    stamp(5)
    P("L_G_red:")
    P(f"s_cmp_ge_u32 {S_J}, 14"); P("s_cbranch_scc1 L_G_end")
    P(f"s_lshl_b32 s34, {S_J}, 3"); P(f"s_add_u32 s34, s34, {S_KVH}")
    P("s_mul_i32 s58, s34, 147"); P("s_lshr_b32 s58, s58, 12")
    P("s_mul_i32 s35, s58, 28"); P("s_sub_u32 s59, s34, s35")
    P("s_mul_i32 s34, s58, 896"); P("s_lshl_b32 s35, s59, 5"); P("s_add_u32 s34, s34, s35")
    P("v_and_b32 v2, 3, v1"); P("v_lshlrev_b32 v2, 3, v2"); P("v_add_u32 v2, s34, v2")
    P(f"global_load_dwordx2 v[60:61], v2, {X_}")
    Lg = lbl("dbg"); Ld = lbl("dbgd")
    P(f"s_mov_b32 {S_SPIN}, {cfg.spin_bound >> 4}")
    P(f"{Lg}:")
    P(f"s_load_dwordx8 s[60:67], {DBG_}, 0 glc")
    P(f"s_sub_u32 {S_SPIN}, {S_SPIN}, 1"); P(f"s_cbranch_scc1 {Ld}")
    P("s_waitcnt lgkmcnt(0)")
    P("s_and_b32 s34, s60, s61")
    for k in range(62, 68): P(f"s_and_b32 s34, s34, s{k}")
    P("s_bitcmp1_b32 s34, 0"); P(f"s_cbranch_scc1 {Ld}")
    P("s_sleep 8"); P(f"s_branch {Lg}")
    P(f"{Ld}:")
    P("s_waitcnt lgkmcnt(0)")
    P("s_mov_b64 exec, 1")
    P(f"v_mov_b32 v3, {TAGS}")
    for k in range(8):
        P(f"v_mov_b32 v4, s{60 + k}"); P(f"ds_write_b32 v3, v4 offset:{4 * k}")
    P("s_mov_b64 exec, -1")
    P("s_waitcnt lgkmcnt(0)")
    P("v_bfe_u32 v4, v1, 2, 3"); P("v_lshlrev_b32 v4, 2, v4"); P(f"v_add_u32 v4, {TAGS}, v4"); P("ds_read_b32 v62, v4")
    P("v_lshlrev_b32 v4, 2, v11"); P(f"v_add_u32 v4, {TAGS}, v4"); P("ds_read_b32 v63, v4"); P("ds_read_b32 v64, v4 offset:16")
    stamp(6)
    P("s_mul_i32 s34, s58, 7"); P("s_lshr_b32 s35, s59, 2"); P("s_add_u32 s34, s34, s35"); P("s_lshl_b32 s34, s34, 13")
    P("s_and_b32 s35, s59, 3"); P("s_lshl_b32 s35, s35, 6"); P("s_add_u32 s34, s34, s35")
    P("v_lshrrev_b32 v3, 2, v1"); P("v_lshlrev_b32 v3, 8, v3"); P("v_and_b32 v4, 3, v1"); P("v_lshl_add_u32 v3, v4, 4, v3"); P("v_add_u32 v3, s34, v3")
    P(f"v_add_u32 v5, {WS_Y}, v3"); P(f"v_add_u32 v6, {WS_Y + 4096}, v3")
    P(f"v_add_u32 v4, {WS_DP + 4096}, v3"); P(f"v_add_u32 v3, {WS_DP}, v3")
    P("s_mov_b32 s44, -1"); P("s_mov_b32 s45, 0xffff")
    for r in range(36, 40): P(f"v_mov_b32 v{r}, 0")
    P("s_waitcnt lgkmcnt(0)")
    def dp_loads():
        P(f"global_load_dwordx4 v[32:35], v3, {WS_} sc1")
        P("s_mov_b64 exec, s[44:45]")
        P(f"global_load_dwordx4 v[36:39], v4, {WS_} sc1")
        P("s_mov_b64 exec, -1")
    def dp_check():
        P("v_perm_b32 v40, v33, v32, s76"); P("v_perm_b32 v41, v35, v34, s77"); P("v_or_b32 v40, v40, v41"); P("v_cmp_eq_u32 s[40:41], v62, v40")
        P("v_perm_b32 v40, v37, v36, s76"); P("v_perm_b32 v41, v39, v38, s77"); P("v_or_b32 v40, v40, v41"); P("v_cmp_eq_u32 s[42:43], v62, v40")
        P("s_orn2_b64 s[42:43], s[42:43], s[44:45]")
        P("s_and_b64 s[40:41], s[40:41], s[42:43]"); P("s_cmp_eq_u64 s[40:41], -1")
    poll_loop("dp", dp_loads, dp_check, sleep=cfg.psleep * 2)
    mask_payload(range(32, 40))
    for r in range(4): P(f"v_add_f32 v{32 + r}, v{32 + r}, v{36 + r}")
    quadsum4(32, 40)
    for r in range(0, 4, 2):
        P(f"v_cvt_pk_bf16_f32 v40, v{32 + r}, v{33 + r}")
        P(f"v_lshlrev_b32 v{32 + r}, 16, v40"); P(f"v_and_b32 v{33 + r}, 0xffff0000, v40")
    for r in range(4): P(f"v_mul_f32 v{40 + r}, 0xbfb8aa3b, v{32 + r}")
    for r in range(4): P(f"v_exp_f32 v{40 + r}, v{40 + r}")
    for r in range(4): P(f"v_add_f32 v{40 + r}, 1.0, v{40 + r}")
    for r in range(4): P(f"v_rcp_f32 v{40 + r}, v{40 + r}")
    for r in range(4): P(f"v_mul_f32 v{52 + r}, v{32 + r}, v{40 + r}")
    for r in range(0, 4, 2):
        P(f"v_cvt_pk_bf16_f32 v40, v{52 + r}, v{53 + r}")
        P(f"v_lshlrev_b32 v{52 + r}, 16, v40"); P(f"v_and_b32 v{53 + r}, 0xffff0000, v40")
    P("v_lshlrev_b32 v56, 16, v60"); P("v_and_b32 v57, 0xffff0000, v60"); P("v_lshlrev_b32 v58, 16, v61"); P("v_and_b32 v59, 0xffff0000, v61")
    stamp(7)
    srd(48, OUT_, 3584)
    lds_wait("v15", F_YPUB, 4, "v16")
    stamp(8)
    def y_loads():
        P(f"global_load_dwordx4 v[16:19], v5, {WS_} sc1"); P(f"global_load_dwordx4 v[20:23], v6, {WS_} sc1")
    def y_check():
        P("v_perm_b32 v40, v17, v16, s76"); P("v_perm_b32 v41, v19, v18, s77"); P("v_or_b32 v40, v40, v41"); P("v_cmp_eq_u32 s[40:41], v63, v40")
        P("v_perm_b32 v40, v21, v20, s76"); P("v_perm_b32 v41, v23, v22, s77"); P("v_or_b32 v40, v40, v41"); P("v_cmp_eq_u32 s[42:43], v64, v40")
        P("s_and_b64 s[40:41], s[40:41], s[42:43]"); P("s_cmp_eq_u64 s[40:41], -1")
    poll_loop("yg", y_loads, y_check, sleep=0)
    stamp(9)
    mask_payload(range(16, 24))
    for r in range(4): P(f"v_add_f32 v{16 + r}, v{16 + r}, v{20 + r}")
    quadsum4(16, 40)
    for r in range(0, 4, 2):
        P(f"v_cvt_pk_bf16_f32 v40, v{16 + r}, v{17 + r}")
        P(f"v_lshlrev_b32 v{16 + r}, 16, v40"); P(f"v_and_b32 v{17 + r}, 0xffff0000, v40")
    for r in range(4): P(f"v_mul_f32 v{16 + r}, v{16 + r}, v{52 + r}")
    for r in range(0, 4, 2):
        P(f"v_cvt_pk_bf16_f32 v40, v{16 + r}, v{17 + r}")
        P(f"v_lshlrev_b32 v{16 + r}, 16, v40"); P(f"v_and_b32 v{17 + r}, 0xffff0000, v40")
    for r in range(4): P(f"v_add_f32 v{16 + r}, v{16 + r}, v{56 + r}")
    P("v_cvt_pk_bf16_f32 v20, v16, v17"); P("v_cvt_pk_bf16_f32 v21, v18, v19")
    P("s_mov_b64 exec, 0xf")
    P(f"buffer_store_dwordx2 v[20:21], v2, s[48:51], 0 offen {cfg.out_flags}")
    P("s_mov_b64 exec, -1")
    stamp(10)
    P("L_G_end:")
    P("s_waitcnt vmcnt(0) lgkmcnt(0)")
    dump_stamps()
    P("s_endpgm")

def quadsum4(a, t):
    for rr in (4, 8):
        for r in range(4): P(f"v_add_f32_dpp v{a + r}, v{a + r}, v{a + r} row_ror:{rr} row_mask:0xf bank_mask:0xf")
    for sw in ("v_permlane16_swap_b32", "v_permlane32_swap_b32"):
        for r in range(4): P(f"v_mov_b32 v{t + r}, v{a + r}")
        for r in range(4): P(f"{sw} v{a + r}, v{t + r}")
        for r in range(4): P(f"v_add_f32 v{a + r}, v{a + r}, v{t + r}")

WS_RE = re.compile(r"^global_(load|store)_(dword(?:x[234])?) (\S+), (\S+), s\[30:31\](.*)$")
def to_buffer(P_):
    out = []
    for kind, x in P_.L:
        if kind == "i" and not x.label:
            m = WS_RE.match(x.raw)
            if m:
                ls, w, a, b, rest = m.groups()
                if ls == "load": t = f"buffer_load_{w} {a}, {b}, s[{WSRD}:{WSRD + 3}], 0 offen{rest}"
                else: t = f"buffer_store_{w} {b}, {a}, s[{WSRD}:{WSRD + 3}], 0 offen{rest}"
                out.append(("i", Ins(t))); continue
        out.append((kind, x))
    P_.L = out
def build(path):
    global P
    P = Prog(); globals()['P'] = P
    uid[0] = 0
    prologue(); loader(); compute(); f1_wave(); f2_wave()
    P("L_END:")
    P("s_endpgm")
    to_buffer(P)
    P.finalize()
    mv, ms = P.maxreg()
    name = KN + "_kernel"
    txt = (HEADER + f"; @launch grid=(256,1,1) block=(448,1,1) lds={LDS_SIZE}\n"
        + '.amdgcn_target "amdgcn-amd-amdhsa--gfx950"\n.text\n'
        + f".globl {name}\n.p2align 8\n.type {name},@function\n{name}:\n"
        + P.text() + "\n"
        + '.section .rodata,"a"\n.p2align 6\n'
        + f".amdhsa_kernel {name}\n  .amdhsa_next_free_vgpr 256\n  .amdhsa_next_free_sgpr 102\n  .amdhsa_accum_offset 256\n"
        + "  .amdhsa_group_segment_fixed_size 0\n  .amdhsa_kernarg_size 96\n  .amdhsa_user_sgpr_count 2\n  .amdhsa_user_sgpr_kernarg_segment_ptr 1\n  .amdhsa_system_sgpr_workgroup_id_x 1\n.end_amdhsa_kernel\n")
    open(path, "w").write(txt)
    print(path, "max v", mv, "max s", ms, "auto nops", P.nnops, "lines", len(P.L))

if __name__ == "__main__":
    ap = argparse.ArgumentParser()
    ap.add_argument("out"); ap.add_argument("--stamps", action="store_true"); ap.add_argument("-W", type=int, default=24)
    ap.add_argument("--set", action="append", default=[])
    a = ap.parse_args()
    cfg.stamps = a.stamps; cfg.W = a.W
    for kv in a.set:
        k, v = kv.split("=")
        setattr(cfg, k, int(v, 0) if (v.lstrip('-').isdigit() or v.startswith("0x")) else v)
    build(a.out)
```
